```python
import torch

def _softmax(x, axis=-1):
    return torch.softmax(x, dim=axis)

def _gelu(x):
    return torch.nn.functional.gelu(x, approximate='tanh')

def _silu(x):
    return torch.nn.functional.silu(x)

def _sigmoid(x):
    return torch.sigmoid(x)

def _layernorm(x, axis=-1, eps=1e-05):
    m = x.mean(dim=axis, keepdim=True)
    v = x.var(dim=axis, keepdim=True, unbiased=False)
    return (x - m) / torch.sqrt(v + eps)

def _scatter_add(tgt, idx, src, axis=0):
    return tgt.clone().index_add_(axis, idx, src)

def _segment_sum(src, seg, n):
    out = torch.zeros((n,) + src.shape[1:], dtype=src.dtype)
    return out.index_add_(0, seg, src)

def _pad(x, pw):
    flat = tuple((v for pair in reversed(pw) for v in pair))
    return torch.nn.functional.pad(x, flat)
kernel_name = 'adaLN_cond__sliding_block_cached__glu_gated_bilinear__prompt'

def setup_inputs():

    _w = lambda a: (lambda t: t.to(torch.bfloat16) if t.is_floating_point() else t)(torch.as_tensor(a))

    def _A_setup():
        B, Sq, D = (1, 2048, 576)
        Hq, Hkv, Sk, Dh = (32, 16, 2048, 128)
        assert Hq % Hkv == 0, (Hq, Hkv)
        return {'x': _w((lambda *s: torch.randn(*s, dtype=torch.bfloat16) * 0.05)(B, Sq, D)), 'k_cache': _w((lambda *s: torch.randn(*s, dtype=torch.bfloat16) * 1.6)(B, Hkv, Sk, Dh)), 'v_cache': _w((lambda *s: torch.randn(*s, dtype=torch.bfloat16) * 0.8)(B, Hkv, Sk, Dh)), 'wq': _w((lambda *s: torch.randn(*s, dtype=torch.bfloat16) * 1.6)(D, Hq * Dh) * D ** (-0.5)), 'wo': _w((lambda *s: torch.randn(*s, dtype=torch.bfloat16) * 0.8)(Hq * Dh, D) * (Hq * Dh) ** (-0.5))}
    _A_in = _A_setup()

    def _B_setup():
        B, S, D, F = (1, 2048, 576, 4608)
        return {'x': _w((lambda *s: torch.randn(*s, dtype=torch.bfloat16) * 0.05)(B, S, D)), 'w_gate': _w((lambda *s: torch.randn(*s, dtype=torch.bfloat16) * 0.4)(D, F) * D ** (-0.5)), 'w_up': _w((lambda *s: torch.randn(*s, dtype=torch.bfloat16) * 0.4)(D, F) * D ** (-0.5)), 'w_down': _w((lambda *s: torch.randn(*s, dtype=torch.bfloat16) * 0.4)(F, D) * F ** (-0.5))}
    _B_in = _B_setup()
    return {'A_x': _A_in['x'], 'A_k_cache': _A_in['k_cache'], 'A_v_cache': _A_in['v_cache'], 'A_wq': _A_in['wq'], 'A_wo': _A_in['wo'], 'B_x': _B_in['x'], 'B_w_gate': _B_in['w_gate'], 'B_w_up': _B_in['w_up'], 'B_w_down': _B_in['w_down'], 'c': _w((lambda *s: torch.randn(*s, dtype=torch.bfloat16) * 0.2)(1, 576) * 8.0), 'w_mod': _w((lambda *s: torch.randn(*s, dtype=torch.bfloat16) * 0.2)(576, 6 * 576) * 576 ** (-0.5) * 8.0)}

def reference(A_x, A_k_cache, A_v_cache, A_wq, A_wo, B_x, B_w_gate, B_w_up, B_w_down, c, w_mod):

    def _A_ref(x, k_cache, v_cache, wq, wo):
        B, Sq, D = x.shape
        Hq, Dh = (32, 128)
        Hkv, Sk = (k_cache.shape[1], k_cache.shape[2])
        W = min(4096, max(256, Sk // 4))
        rep = Hq // Hkv
        q = (lambda x, *d: x.permute(*d))((x @ wq).reshape(B, Sq, Hq, Dh), 0, 2, 1, 3)
        k = (lambda x, n, axis: torch.repeat_interleave(x, n, dim=axis))(k_cache[:, :, Sk - W:, :], rep, axis=1)
        v = (lambda x, n, axis: torch.repeat_interleave(x, n, dim=axis))(v_cache[:, :, Sk - W:, :], rep, axis=1)
        scores = torch.einsum('bhqd,bhkd->bhqk', q, k) * Dh ** (-0.5)
        p = _softmax(scores, axis=-1)
        o = torch.einsum('bhqk,bhkd->bhqd', p, v)
        return (lambda x, *d: x.permute(*d))(o, 0, 2, 1, 3).reshape(B, Sq, Hq * Dh) @ wo

    def _B_ref(x, w_gate, w_up, w_down):
        g = torch.einsum('bsd,df->bsf', x, w_gate)
        u = torch.einsum('bsd,df->bsf', x, w_up)
        h = g * u
        return torch.einsum('bsf,fd->bsd', h, w_down)
    x = A_x
    mod = (_silu(c) @ w_mod).reshape(c.shape[0], 6, 1, -1)
    sa, ca, ga, sb, cb, gb = (mod[:, 0].clone(), mod[:, 1].clone(), mod[:, 2].clone(), mod[:, 3].clone(), mod[:, 4].clone(), mod[:, 5].clone())
    h = _layernorm(x, axis=-1) * (1 + ca) + sa
    x = x + ga * _A_ref(h, A_k_cache, A_v_cache, A_wq, A_wo)
    h = _layernorm(x, axis=-1) * (1 + cb) + sb
    x = x + gb * _B_ref(h, B_w_gate, B_w_up, B_w_down)
    return x
```

```python
import re
RX = re.compile(r'\b([vs])\[(\d+):(\d+)\]|\b([vs])(\d+)\b|\b(vcc|exec|m0|scc)\b')
def regs_of(tok):
    out = []
    for m in RX.finditer(tok):
        if m.group(1):
            out += [(m.group(1), i) for i in range(int(m.group(2)), int(m.group(3)) + 1)]
        elif m.group(4):
            out.append((m.group(4), int(m.group(5))))
        else:
            out.append((m.group(6), 0))
    return out
TRANS = ('v_exp_f32', 'v_log_f32', 'v_rcp_f32', 'v_rsq_f32', 'v_sqrt_f32', 'v_sin_f32', 'v_cos_f32')
def vr(a, n=1):
    return f'v{a}' if n == 1 else f'v[{a}:{a+n-1}]'
def sr(a, n=1):
    return f's{a}' if n == 1 else f's[{a}:{a+n-1}]'

class Kern:
    def __init__(s, name):
        s.name = name; s.out = []; s.reset(); s.nops = 0; s.ninst = 0; s.maxv = 0; s.stat = {}
    def reset(s):
        s.pos = 0; s.lg = []; s.vm = []
        s.valu_w = {}; s.trans_w = {}; s.mf_w = {}; s.mf_c = {}; s.st_d = {}; s.sv_w = {}; s.m0_w = -99; s.exec_w = -99
    def raw(s, t): s.out.append(t)
    def label(s, n): s.out.append(n + ':')
    def comment(s, t): s.out.append('  ; ' + t)
    def _wait(s, vm=None, lg=None):
        p = []
        if vm is not None:
            vm = min(vm, 63); p.append(f'vmcnt({vm})'); s.vm = s.vm[len(s.vm) - vm:] if vm else []
        if lg is not None:
            lg = min(lg, 15); p.append(f'lgkmcnt({lg})'); s.lg = s.lg[len(s.lg) - lg:] if lg else []
        if p:
            s.out.append('  s_waitcnt ' + ' '.join(p)); s.pos += 1; s.ninst += 1
    def wait(s, vmtag=None, lg0=False, vm0=False, lgtag=None):
        vm = lg = None
        if vm0 and s.vm: vm = 0
        if vmtag is not None:
            tags = vmtag if isinstance(vmtag, (list, tuple, set)) else [vmtag]
            idx = [i for i, e in enumerate(s.vm) if e[1] in tags]
            if idx: vm = len(s.vm) - 1 - max(idx)
        if lg0 and s.lg: lg = 0
        if lgtag is not None:
            idx = [i for i, e in enumerate(s.lg) if e[1] == lgtag]
            if idx: lg = len(s.lg) - 1 - max(idx)
        s._wait(vm, lg)
    def nop(s, n):
        while n > 0:
            c = min(n, 8); s.out.append(f'  s_nop {c-1}'); s.pos += c; n -= c; s.nops += 1; s.ninst += 1
    def I(s, text, tag=None):
        text = text.strip()
        op, _, rest = text.partition(' ')
        ops = [o.strip() for o in rest.split(',')] if rest else []
        kind = 'salu'; dst = []; src = []
        R = lambda i: regs_of(ops[i])
        allr = lambda a: [r for o in ops[a:] for r in regs_of(o)]
        if op.startswith('v_mfma'):
            kind = 'mfma'; dst = R(0); src = R(1) + R(2); srcc = R(3)
        elif op.startswith('ds_read') or op.startswith('ds_bpermute') or op.startswith('ds_swizzle'):
            kind = 'ds'; dst = R(0); src = allr(1)
        elif op.startswith('ds_write'):
            kind = 'ds'; src = allr(0)
        elif op.startswith('buffer_load') and ' lds' in text:
            kind = 'dma'; src = allr(0)
        elif op.startswith('buffer_load') or op.startswith('global_load'):
            kind = 'vm'; dst = R(0); src = allr(1)
        elif op.startswith('buffer_store') or op.startswith('global_store') or op.startswith('buffer_atomic') or op.startswith('global_atomic'):
            kind = 'vm'; src = allr(0)
        elif op.startswith('v_'):
            kind = 'valu'; dst = R(0); src = allr(1)
            if 'swap' in op: dst = R(0) + R(1); src = dst
            if op.startswith('v_cndmask') and len(ops) == 3: src.append(('vcc', 0))
            if op.startswith('v_fmac') or op.startswith('v_dot2c') or 'dpp' in op or 'row_' in text or 'quad_perm' in text: src = src + R(0)
            if op.startswith('v_add_co') or op.startswith('v_addc_co'): dst = R(0) + R(1); src = allr(2)
        elif op.startswith('s_load'):
            kind = 'smem'; dst = R(0); src = allr(1)
        elif op == 's_waitcnt':
            raise Exception('use wait()')
        elif op in ('s_barrier', 's_endpgm', 's_setprio', 's_branch', 's_sleep') or op.startswith('s_cbranch'):
            kind = 'ctl'
        elif op.startswith('s_cmp'):
            src = allr(0)
        else:
            dst = R(0); src = allr(1)
        rd = src + (srcc if kind == 'mfma' else [])
        touched = set(rd) | set(dst)
        for r in touched:
            if r[0] == 'v': s.maxv = max(s.maxv, r[1] + 1)
        lg = vm = None
        for i, e in enumerate(s.lg):
            if e[0] & touched: lg = 0 if e[2] or any(x[2] for x in s.lg) else len(s.lg) - 1 - i
        for i, e in enumerate(s.vm):
            if e[0] & touched: vm = len(s.vm) - 1 - i
        if op == 's_endpgm' and s.vm: vm = 0
        s._wait(vm, lg)
        need = 0
        def req(p, n):
            nonlocal need
            need = max(need, n - (s.pos - p - 1))
        isvmem = kind in ('vm', 'dma', 'ds')
        if kind == 'mfma':
            for r in rd:
                if r in s.valu_w: req(s.valu_w[r], 2)
            for r in src:
                if r in s.mf_w: req(s.mf_w[r][0], 12)
            for r in srcc:
                if r in s.mf_w and s.mf_w[r][1] != tuple(srcc): req(s.mf_w[r][0], 10)
            for r in dst:
                if r in s.mf_w and s.mf_w[r][1] != tuple(dst): req(s.mf_w[r][0], 10)
            req(s.exec_w, 4)
        if kind == 'valu' or isvmem:
            for r in touched:
                if r in s.mf_w: req(s.mf_w[r][0], 12)
        if kind == 'valu':
            for r in dst:
                if r in s.mf_c: req(s.mf_c[r], 7)
                if r in s.st_d: req(s.st_d[r], 2)
            for r in rd:
                if r in s.trans_w: req(s.trans_w[r], 1)
                if r[0] != 'v' and r in s.sv_w: req(s.sv_w[r], 2)
                if r in s.valu_w and ('swap' in op or 'dpp' in op or 'row_' in text or 'quad_perm' in text): req(s.valu_w[r], 2)
                if r in s.valu_w and (op.startswith('v_readfirstlane') or op.startswith('v_readlane')): req(s.valu_w[r], 1)
            if 'row_' in text or 'quad_perm' in text or 'swap' in op: req(s.exec_w, 5)
        if isvmem:
            for r in rd:
                if r[0] != 'v' and r in s.sv_w: req(s.sv_w[r], 5)
                if r in s.trans_w: req(s.trans_w[r], 1)
            for r in dst:
                if r in s.mf_c: req(s.mf_c[r], 7)
        if kind == 'dma': req(s.m0_w, 1)
        if kind in ('salu', 'smem', 'ctl'):
            for r in rd:
                if r in s.sv_w: req(s.sv_w[r], 1)
        if need > 0: s.nop(need)
        s.out.append('  ' + text); p = s.pos; s.pos += 1; s.ninst += 1
        s.stat[kind] = s.stat.get(kind, 0) + 1
        if kind == 'mfma':
            for r in dst: s.mf_w[r] = (p, tuple(dst)); s.valu_w.pop(r, None)
            for r in srcc: s.mf_c[r] = p
        elif kind == 'valu':
            for r in dst:
                if r[0] == 'v':
                    s.valu_w[r] = p; s.mf_w.pop(r, None); s.trans_w.pop(r, None)
                    if op.startswith(TRANS): s.trans_w[r] = p
                else:
                    s.sv_w[r] = p
                    if r[0] == 'exec': s.exec_w = p
        elif kind == 'ds':
            s.lg.append((set(dst), tag, False))
            if op in ('ds_write_b128', 'ds_write_b96', 'ds_write_b64'):
                for r in src: s.st_d[r] = p
        elif kind == 'smem':
            s.lg.append((set(dst), tag, True))
        elif kind in ('vm', 'dma'):
            s.vm.append((set(dst), tag))
            if 'store' in op and ('x4' in op or 'x3' in op or 'x2' in op):
                for r in R(0): s.st_d[r] = p
        else:
            for r in dst:
                if r[0] == 'm0': s.m0_w = p
                if r[0] == 'exec': s.exec_w = p
                s.sv_w.pop(r, None)
        assert len(s.vm) <= 63, 'vmcnt overflow'
    def L(s, block):
        for t in block.strip().split('\n'):
            t = t.split(';')[0].strip()
            if t: s.I(t)
    def srd(s, d, ptr, nbytes):
        s.I(f's_mov_b32 s{d}, s{ptr}'); s.I(f's_mov_b32 s{d+1}, s{ptr+1}')
        s.I(f's_mov_b32 s{d+2}, {nbytes:#x}'); s.I(f's_mov_b32 s{d+3}, 0x00020000')

def write_file(path, kerns):
    hdr = open('adaLN_cond__sliding_block_cached__glu_gated_bilinear__prompt.s.ref').read().split('; @launch')[0]
    t = hdr
    for k, g, b, l in kerns:
        t += f'; @launch kernel={k.name} grid=({g},1,1) block=({b},1,1) lds={l}\n'
    t += '.amdgcn_target "amdgcn-amd-amdhsa--gfx950"\n.text\n'
    seen = []
    for k, g, b, l in kerns:
        if k in seen: continue
        seen.append(k)
        t += f'.globl {k.name}\n.p2align 8\n.type {k.name},@function\n{k.name}:\n' + '\n'.join(k.out) + '\n'
    t += '.section .rodata,"a"\n'
    for k in seen:
        nv = max(8, (k.maxv + 7) // 8 * 8)
        t += f'''.p2align 6
.amdhsa_kernel {k.name}
  .amdhsa_next_free_vgpr {nv}
  .amdhsa_next_free_sgpr 102
  .amdhsa_accum_offset {nv}
  .amdhsa_group_segment_fixed_size 0
  .amdhsa_kernarg_size 112
  .amdhsa_user_sgpr_count 2
  .amdhsa_user_sgpr_kernarg_segment_ptr 1
  .amdhsa_system_sgpr_workgroup_id_x 1
.end_amdhsa_kernel
'''
    open(path, 'w').write(t)
```

```python
from gen_k3 import *
import struct
def f2u(x): return struct.unpack('I', struct.pack('f', x))[0]

def gen_k1(thr=0x5d800000):
    k = Kern('k1_attn_kernel')
    guard(k, 256)
    k.L('''s_load_dwordx2 s[4:5], s[0:1], 8
           s_load_dwordx2 s[6:7], s[0:1], 16
           s_load_dwordx2 s[8:9], s[0:1], 24
           s_load_dwordx2 s[10:11], s[0:1], 32
           s_load_dwordx2 s[48:49], s[0:1], 104''')
    lane_fields(k)
    vQ, vH, vK, vV, vO, vS = 8, 9, 10, 11, 12, 13
    aK = 14; aV = 22; aO = 26; aXw = 32; aXr = 33; L = 34; LT = 35; LT1 = 36; ET = 38; TM = 42
    FR = 48; O = 80; QF = 144; S = [176, 192]; P = [208, 216]; NEG = 224; HB = 224; aQ = 176; aH = 188
    QS = 49152
    k.L(f'''s_and_b32 s30, s2, 7
            s_lshl_b32 s30, s30, 1
            s_bfe_u32 s31, s2, 0x10003
            s_add_u32 s30, s30, s31
            s_lshr_b32 s31, s2, 4
            s_and_b32 s32, s3, 3
            s_lshr_b32 s33, s3, 2
            s_lshl_b32 s34, s3, 10''')
    k.L(f'''v_lshrrev_b32 v6, 5, v0
            v_bfe_u32 v7, v0, 2, 3
            v_and_b32 v44, 3, v6
            v_xor_b32 v7, v7, v44
            v_lshlrev_b32 v6, 13, v6
            v_lshl_add_u32 v6, v7, 6, v6
            v_lshl_add_u32 v6, v3, 4, v6
            s_lshl_b32 s40, s30, 9
            v_add_u32 v{vQ}, s40, v6
            s_lshl_b32 s40, s31, 2
            s_add_u32 s40, s40, s33
            s_mul_i32 s40, s40, 36
            s_add_u32 s40, s40, s32
            s_lshl_b32 s40, s40, 10
            s_add_u32 s40, s40, {WS_H}
            v_lshlrev_b32 v45, 4, v1
            v_add_u32 v{vH}, s40, v45''')
    k.wait(lg0=True)
    k.srd(12, 8, 576 * 8192); k.srd(24, 48, WS_SIZE)
    p = Pipe(k, FR)
    def dma(m0, so, v, srd, tag):
        p.dma([f's_add_u32 m0, s34, {m0}', f's_mov_b32 s40, {so}', f'buffer_load_dwordx4 v{v}, s[{srd}:{srd+3}], s40 offen lds'], tag)
    def dma_q(s):
        b = (s % 3) * QS
        for i in range(2): dma(b + 32768 + i * 8192, (72 * i + 4 * s) * 1024, vH, 24, ('Q', s))
        for i in range(4): dma(b + i * 8192, (64 * s + 16 * i) * 8192, vQ, 12, ('Q', s))
    def dma_k(e):
        for i in range(2): dma((e % 4) * 16384 + i * 8192, (64 * e + 32 * i) * 256, vK, 16, ('KV', e))
    def dma_v(e):
        for i in range(2): dma(65536 + (e % 4) * 16384 + i * 8192, (64 * e + 32 * i) * 256, vV, 20, ('KV', e + 1))
    OB = [131072, 0, 98304, 32768, 65536, 131072, 0, 98304, 32768]
    def dma_o(j):
        for i in range(4): dma(OB[j] + i * 8192, i * 64 * 1152 + j * 128, vO, 44, ('O', j))
    dma_q(0); p.flush_dma()
    k.srd(16, 4, 16 * 524288); k.srd(20, 6, 16 * 524288); k.srd(44, 10, 4096 * 1152)
    dma_q(1); dma_q(2); p.flush_dma()
    k.L(f'''v_lshrrev_b32 v6, 4, v0
            v_and_b32 v7, 15, v0
            v_and_b32 v44, 15, v6
            v_xor_b32 v7, v7, v44
            v_lshlrev_b32 v46, 8, v6
            s_lshl_b32 s40, s30, 19
            s_add_u32 s40, s40, {1536*256}
            v_add_u32 v46, s40, v46
            v_lshl_add_u32 v{vK}, v7, 4, v46
            v_and_b32 v44, 3, v6
            v_xor_b32 v7, v2, v44
            v_lshl_add_u32 v46, v7, 6, v46
            v_lshl_add_u32 v{vV}, v3, 4, v46
            s_lshl_b32 s43, s30, 8''')
    wo_dma_off(k, vO, 7, 44, 43)
    k.L(f'''s_lshl_b32 s40, s30, 6
            s_lshl_b32 s41, s31, 2
            s_add_u32 s40, s40, s41
            s_add_u32 s40, s40, s32
            s_mul_i32 s40, s40, 18
            s_add_u32 s40, s40, s33
            s_lshl_b32 s40, s40, 11
            s_add_u32 s40, s40, {WS_PART}
            v_add_u32 v{vS}, s40, v45
            s_lshl_b32 s40, s3, 13
            s_add_u32 s41, s40, 32768
            v_add_u32 v{aXw}, s41, v45
            s_xor_b32 s40, s40, 32768
            s_add_u32 s41, s40, 32768
            v_add_u32 v{aXr}, s41, v45
            s_lshl_b32 s40, s32, 12
            s_add_u32 s40, s40, 32768
            v_add_u32 v{aH}, s40, v45
            v_add_u32 v{aH+1}, {QS}, v{aH}
            v_add_u32 v{aH+2}, {2*QS}, v{aH}
            v_lshl_add_u32 v6, v5, 3, v2
            v_lshlrev_b32 v6, 9, v6
            v_lshl_add_u32 v6, v4, 5, v6
            v_and_b32 v7, 1, v3
            v_lshl_add_u32 v6, v7, 4, v6
            v_lshrrev_b32 v7, 1, v3
            v_lshl_add_u32 v6, v7, 3, v6
            s_lshl_b32 s40, s33, 8
            v_add_u32 v6, s40, v6''')
    for dt in range(4):
        k.I(f'v_xor_b32 v7, {dt}, v2'); k.I(f'v_lshl_add_u32 v{aQ+dt}, v7, 6, v6')
        for sl in (1, 2): k.I(f'v_add_u32 v{aQ+4*sl+dt}, {sl*QS}, v{aQ+dt}')
    k.L(f'''v_and_b32 v6, 31, v0
            v_and_b32 v7, 15, v0
            v_xor_b32 v7, v7, v5
            v_lshlrev_b32 v6, 8, v6
            v_lshl_add_u32 v{aK}, v7, 4, v6''')
    for ks in range(1, 8): k.I(f'v_xor_b32 v{aK+ks}, {32*ks}, v{aK}')
    k.L(f'''v_lshl_add_u32 v6, v5, 2, v2
            v_lshlrev_b32 v6, 8, v6
            v_lshl_add_u32 v6, v4, 5, v6
            v_lshl_add_u32 v6, v3, 3, v6
            v_add_u32 v6, 0x10000, v6''')
    for dt in range(4):
        k.I(f'v_xor_b32 v7, {dt}, v2'); k.I(f'v_lshl_add_u32 v{aV+dt}, v7, 6, v6')
    wo_addr(k, 6, 7)
    k.L(f'''s_lshl_b32 s40, s33, 14
            v_add_u32 v{aO}, s40, v6
            s_xor_b32 s40, s40, 16384
            v_add_u32 v{aO+3}, s40, v6
            s_mov_b32 s36, {f2u(128**-0.5 * 1.4426950408889634):#x}
            s_mov_b32 s37, {thr:#x}
            v_mov_b32 v{L}, 0''')
    for wdw in (1, 2):
        for o in (0, 3): k.I(f'v_add_u32 v{aO+o+wdw}, {wdw*65536}, v{aO+o}')
    tr2 = lambda a, off, d: (lambda f: [f'ds_read_b64_tr_b16 v[{f}:{f+1}], v{a} offset:{off}', f'ds_read_b64_tr_b16 v[{f+2}:{f+3}], v{a} offset:{off+d}'])
    mf = lambda acc, b, c: (lambda f: f'{MF} v[{acc}:{acc+15}], v[{f}:{f+3}], v[{b}:{b+3}], ' + ('0' if c is None else f'v[{c}:{c+15}]'))
    lastq = {}
    for s in range(9):
        order = [(ks, dt) for ks in range(4) for dt in range(4)]
        if s == 8: order = [(ks, dt) for dt in range(4) for ks in range(4)]
        seen = set()
        for ks, dt in order:
            hb = HB + 16 * (s & 1) + 4 * ks; ex = []
            if ks not in seen:
                seen.add(ks); ex = [f'ds_read_b128 v[{hb}:{hb+3}], v{aH + s%3} offset:{ks*1024}']
            acc = O + 16 * dt
            lastq[dt] = p.add(('Q', s), tr2(aQ + 4 * (s % 3) + dt, ks * 8192, 2048), mf(acc, hb, None if s == 0 and ks == 0 else acc), ex)
    nq = len(p.slots)
    for dt in range(4):
        a = O + 16 * dt
        p.valu([f'v_mul_f32 v{a+r}, s36, v{a+r}' for r in range(16)] +
               [f'v_cvt_pk_bf16_f32 v{QF+8*dt+r}, v{a+2*r}, v{a+2*r+1}' for r in range(8)], lastq[dt] + 2, nq + 2 * dt)
    def softmax_ops(T):
        s = S[T & 1]; pp = P[T & 1]; ops = []
        for i in range(9):
            t = ET + 2 * (i & 1); u = ET + 2 * ((i - 1) & 1)
            if i < 8: ops += [f'v_exp_f32 v{t}, v{s+2*i}', f'v_exp_f32 v{t+1}, v{s+2*i+1}']
            if i == 1: ops += [f'v_add_f32 v{LT}, v{u}, v{u+1}']
            elif i == 2: ops += [f'v_add_f32 v{LT1}, v{u}, v{u+1}']
            elif i > 2: ops += [f'v_add_f32 v{LT}, v{LT}, v{u}', f'v_add_f32 v{LT1}, v{LT1}, v{u+1}']
            if i > 0: ops += [f'v_cvt_pk_bf16_f32 v{pp+i-1}, v{u}, v{u+1}']
        ops += [f'v_add_f32 v{LT}, v{LT}, v{LT1}']
        return ops
    def max_ops(s):
        ops = [f'v_max3_f32 v{TM}, v{s}, v{s+1}, v{s+2}', f'v_max3_f32 v{TM+1}, v{s+3}, v{s+4}, v{s+5}']
        for j, r in enumerate(range(6, 14, 2)): ops.append(f'v_max3_f32 v{TM+(j&1)}, v{TM+(j&1)}, v{s+r}, v{s+r+1}')
        ops += [f'v_max3_f32 v{TM}, v{TM}, v{s+14}, v{s+15}', f'v_max_f32 v{TM}, v{TM}, v{TM+1}', f'v_mov_b32 v{TM+1}, v{TM}',
                f'v_permlane32_swap_b32 v{TM+1}, v{TM}', f'v_max_f32 v{TM}, v{TM}, v{TM+1}']
        return ops
    lastA = {}; lastC = {}; itend = {}
    for T in range(-1, 17):
        e = (T + 1) // 2
        if T + 1 <= 15:
            tl = T + 1
            for ks in range(8):
                c = S[tl & 1] if ks else (None if tl < 2 else NEG)
                lastA[tl] = p.add(('KV', e), lambda f, ks=ks, off=((tl // 2) % 4) * 16384 + (tl & 1) * 8192: [f'ds_read_b128 v[{f}:{f+3}], v{aK+ks} offset:{off}'],
                                  mf(S[tl & 1], QF + 4 * ks, c))
        if T - 1 >= 0:
            tl = T - 1
            for dt in range(4):
                for ks in range(2):
                    acc = O + 16 * dt
                    lastC[dt] = p.add(('KV', e), tr2(aV + dt, ((tl // 2) % 4) * 16384 + (tl & 1) * 8192 + ks * 4096, 2048),
                                      mf(acc, P[tl & 1] + 4 * ks, None if tl == 0 and ks == 0 else acc))
        itend[T] = len(p.slots) - 1
    for T in range(16):
        ops = []
        if T == 0: ops += max_ops(S[0]) + [f'v_sub_f32 v{NEG+r}, 0, v{TM}' for r in range(16)]
        if T < 2: ops += [f'v_add_f32 v{S[T]+r}, v{S[T]+r}, v{NEG}' for r in range(16)]
        ops += softmax_ops(T)
        if T > 0: ops += [f'v_cmp_nge_f32 vcc, s37, v{LT}']
        p.valu(ops, max(lastA[T] + 2, itend[T - 1] + 1), itend[T] + 1)
        def chk(T=T):
            p.flush_v(itend[T] + 1)
            if T > 0:
                k.I(f's_cbranch_vccnz k1_rare{T}'); k.label(f'k1_back{T}')
            k.I(f'v_add_f32 v{L}, v{L}, v{LT}')
        p.hooks[itend[T]] = [chk]
        for i in range(itend[T - 1] + 1, itend[T] + 1): p.budgets[i] = 16 if 1 < T < 15 else 32
    na = len(p.slots)
    OF = QF; PF = 176; A2 = [224, 240]; OUT = [208, 216]
    p.valu([f'v_mov_b32 v{TM}, v{L}', f'v_permlane32_swap_b32 v{TM}, v{L}', f'v_add_f32 v{L}, v{L}, v{TM}', f'v_rcp_f32 v{L}, v{L}'], itend[15] + 1, na)
    cvt_done = {}
    for dt in range(4):
        a = O + 16 * dt
        p.valu([f'v_mul_f32 v{a+r}, v{L}, v{a+r}' for r in range(16)] +
               [f'v_cvt_pk_bf16_f32 v{OF+8*dt+r}, v{a+2*r}, v{a+2*r+1}' for r in range(8)] + [lambda dt=dt: cvt_done.__setitem__(dt, True)],
               lastC[dt] + 2, na + 2 * dt)
        for h in range(2):
            p.xq.append((lambda dt=dt: dt in cvt_done, 0, f'ds_write_b128 v{aXw}, v[{OF+8*dt+4*h}:{OF+8*dt+4*h+3}] offset:{(2*dt+h)*1024}'))
    p.xopen = True
    for i in range(itend[15] + 1, na + 8): p.budgets[i] = 40
    for j in range(9):
        acc = A2[j & 1]
        for n in range(16):
            st = ('O', j); ex = []; b = OF + 4 * n if n < 8 else PF + 4 * (n - 8)
            if j == 0 and n >= 8:
                st = 'X'; ex = [f'ds_read_b128 v[{b}:{b+3}], v{aXr} offset:{(n-8)*1024}']
            i = p.add(st, tr2(aO + (3 if n >= 8 else 0) + (OB[j] >> 16), (OB[j] & 0xffff) + (n & 7) * 2048, 1024), mf(acc, b, None if n == 0 else acc), ex)
        o = OUT[j & 1]
        p.valu([f'v_cvt_pk_bf16_f32 v{o+r}, v{acc+2*r}, v{acc+2*r+1}' for r in range(8)] + [f's_mov_b32 s41, {j*4096}'] +
               [f'buffer_store_dwordx4 v[{o+4*q}:{o+4*q+3}], v{vS}, s[24:27], s41 offen offset:{q*1024}' for q in range(2)], i + 3, i + 16)
    def barrier(st, i, rd):
        if st == 'X':
            if len(cvt_done) < 4 and rd > i: return False
            p.flush_v(na + 8); p.flush_x()
            k.wait(lg0=True); k.I('s_barrier'); return True
        p.flush_dma([st]); k.wait(vmtag=[st], lg0=True); k.I('s_barrier')
        ph, s = st
        if ph == 'Q':
            if 1 <= s <= 6: dma_q(s + 2)
            if s == 7: dma_k(0); dma_k(1); dma_k(2)
            if s == 8: dma_v(0); dma_k(3); dma_v(1)
        if ph == 'KV':
            if s == 0: dma_v(2); dma_v(3)
            if 1 <= s <= 4: dma_k(s + 3)
            if 2 <= s <= 5: dma_v(s + 2)
            if s == 5: dma_o(0)
            if s == 6: dma_o(1)
        if ph == 'O':
            if s == 0: dma_o(2)
            if s == 1: dma_o(3); dma_o(4); dma_o(5)
            if 2 <= s <= 4: dma_o(s + 4)
        return True
    p.run(barrier)
    p.flush_all_v()
    k.wait(vm0=True)
    k.label(f'{k.name}_end'); k.I('s_endpgm')
    for T in range(1, 16):
        k.label(f'k1_rare{T}'); k.reset(); k.nop(16)
        s = S[T & 1]; s2 = S[(T + 1) & 1]
        for t in max_ops(s): k.I(t)
        k.L(f'''v_max_f32 v{TM}, 0, v{TM}
                v_ceil_f32 v{TM}, v{TM}
                v_sub_f32 v{TM+1}, 0, v{TM}
                v_exp_f32 v{TM+1}, v{TM+1}''')
        for r in list(range(s, s + 16)) + list(range(NEG, NEG + 16)) + (list(range(s2, s2 + 16)) if T < 15 else []):
            k.I(f'v_sub_f32 v{r}, v{r}, v{TM}')
        for r in list(range(O, O + 64)) + [L]: k.I(f'v_mul_f32 v{r}, v{r}, v{TM+1}')
        for t in softmax_ops(T): k.I(t)
        k.nop(2); k.I(f's_branch k1_back{T}')
    return (k, 256, 512, 163840)
```

```python
from gen_small import *
from pipe import *
MF = 'v_mfma_f32_32x32x16_bf16'
def lane_fields(k):
    k.L('''v_and_b32 v1, 63, v0
           v_lshrrev_b32 v6, 6, v0
           v_bfe_u32 v2, v0, 2, 2
           v_and_b32 v3, 3, v0
           v_bfe_u32 v4, v0, 4, 1
           v_bfe_u32 v5, v0, 5, 1
           v_readfirstlane_b32 s3, v6''')
def wo_addr(k, d, t):
    k.L(f'''v_lshl_add_u32 v{d}, v5, 2, v2
            v_lshlrev_b32 v{d}, 7, v{d}
            v_lshrrev_b32 v{t}, 1, v2
            v_xor_b32 v{t}, s33, v{t}
            v_lshl_add_u32 v{d}, v{t}, 6, v{d}
            v_and_b32 v{t}, 1, v3
            v_lshl_add_u32 v{d}, v{t}, 5, v{d}
            v_lshrrev_b32 v{t}, 1, v3
            v_lshl_add_u32 v{d}, v{t}, 3, v{d}
            v_lshl_add_u32 v{d}, v4, 4, v{d}''')
def wo_dma_off(k, d, t, t2, srow):
    k.L(f'''v_lshrrev_b32 v{t}, 3, v0
            v_add_u32 v{t}, s{srow}, v{t}
            s_movk_i32 s40, 1152
            v_mul_lo_u32 v{d}, v{t}, s40
            v_bfe_u32 v{t}, v0, 2, 1
            v_xor_b32 v{t}, v{t}, v4
            v_lshl_add_u32 v{d}, v{t}, 6, v{d}
            v_lshl_add_u32 v{d}, v3, 4, v{d}''')

def gen_k3():
    k = Kern('k3_mlp_kernel')
    guard(k, 256)
    k.L('''s_load_dwordx2 s[4:5], s[0:1], 48
           s_load_dwordx2 s[6:7], s[0:1], 56
           s_load_dwordx2 s[8:9], s[0:1], 64
           s_load_dwordx2 s[10:11], s[0:1], 104''')
    lane_fields(k)
    SL = 45056; XB = 90112; DS = [0, 36864, 90112, 126976]
    aW = 8; aH = 11; aD = 14; aX = 18; vW = 19; vH = 22; vD = 23; vS = 24
    HB = 32; FR = 48; ACC = 80
    k.L(f'''s_and_b32 s30, s2, 7
            s_lshl_b32 s30, s30, 1
            s_bfe_u32 s31, s2, 0x10003
            s_add_u32 s30, s30, s31
            s_lshr_b32 s31, s2, 4
            s_and_b32 s32, s3, 3
            s_lshr_b32 s33, s3, 2
            s_lshl_b32 s34, s3, 10''')
    k.I('s_movk_i32 s40, 1821'); k.I('s_movk_i32 s41, 9216'); k.I('s_mul_i32 s42, s30, 576')
    for j in range(3):
        if j < 2: k.I(f'v_add_u32 v6, {512*j}, v0')
        else:
            k.I('v_and_b32 v6, 127, v0'); k.I('v_add_u32 v6, 1024, v6')
        k.L(f'''v_mul_lo_u32 v7, v6, s40
                v_lshrrev_b32 v7, 16, v7
                v_mul_u32_u24 v25, 36, v7
                v_sub_u32 v6, v6, v25
                v_mul_lo_u32 v7, v7, s41
                v_lshl_add_u32 v7, v6, 4, v7
                v_add_u32 v{vW+j}, s42, v7''')
    k.L(f'''s_lshr_b32 s40, s3, 1
            s_lshl_b32 s41, s31, 2
            s_add_u32 s40, s40, s41
            s_mul_i32 s40, s40, 36
            s_and_b32 s41, s3, 1
            s_add_u32 s40, s40, s41
            s_lshl_b32 s40, s40, 10
            s_add_u32 s40, s40, {WS_H2}
            v_lshlrev_b32 v6, 4, v1
            v_add_u32 v{vH}, s40, v6
            s_mul_i32 s43, s30, 288''')
    wo_dma_off(k, vD, 7, 25, 43)
    k.L(f'''s_lshl_b32 s40, s30, 6
            s_lshl_b32 s41, s31, 2
            s_add_u32 s40, s40, s41
            s_add_u32 s40, s40, s32
            s_mul_i32 s40, s40, 18
            s_add_u32 s40, s40, s33
            s_lshl_b32 s40, s40, 11
            s_add_u32 s40, s40, {WS_PART}
            v_add_u32 v{vS}, s40, v6
            s_mul_i32 s40, s32, 18432
            s_add_u32 s40, s40, {XB}
            v_add_u32 v{aX}, s40, v6
            s_lshl_b32 s40, s32, 11
            s_add_u32 s40, s40, 36864
            v_add_u32 v{aH}, s40, v6
            v_add_u32 v{aH+1}, {SL}, v{aH}
            v_add_u32 v{aH+2}, {2*SL}, v{aH}
            v_lshl_add_u32 v7, v5, 3, v2
            v_mul_u32_u24 v7, 576, v7
            v_lshl_add_u32 v7, v4, 5, v7
            v_lshl_add_u32 v{aW}, v3, 3, v7
            v_add_u32 v{aW+1}, {SL}, v{aW}
            v_add_u32 v{aW+2}, {2*SL}, v{aW}''')
    wo_addr(k, aD, 7)
    for j in range(1, 4): k.I(f'v_add_u32 v{aD+j}, {DS[j]}, v{aD}')
    k.wait(lg0=True)
    WSZ = 576 * 9216
    k.srd(12, 4, WSZ); k.srd(16, 6, WSZ); k.srd(20, 8, 4608 * 1152); k.srd(24, 10, WS_SIZE)
    k.L(f'''s_cmp_ge_u32 s3, 6
            s_cselect_b32 s44, s6, s4
            s_cselect_b32 s45, s7, s5
            s_mov_b32 s46, {WSZ}
            s_mov_b32 s47, 0x00020000
            s_cselect_b32 s35, 18432, 0
            s_and_b32 s40, s3, 1
            s_lshl_b32 s40, s40, 10
            s_add_u32 s35, s35, s40
            s_cmp_eq_u32 s33, 1
            s_cbranch_scc1 k3_pathB''')
    saved = (k.pos,)
    for path in (0, 1):
        if path == 1:
            k.label('k3_pathB'); k.reset()
        nt = 5 - path; t0 = 5 * path
        G = [ACC + 32 * t for t in range(nt)]; U = [ACC + 32 * t + 16 for t in range(nt)]
        p = Pipe(k, FR)
        def dma_w(s):
            b = (s % 3) * SL; so = s * 32 * 9216
            for j in range(2):
                for m in range(2):
                    p.dma([f's_add_u32 m0, s34, {b + m*18432 + j*8192}', f's_mov_b32 s40, {so}',
                           f'buffer_load_dwordx4 v{vW+j}, s[{12+4*m}:{15+4*m}], s40 offen lds'], s)
            p.dma([f's_add_u32 m0, s34, {b + 36864}', f's_mov_b32 s40, {s*2048}',
                   f'buffer_load_dwordx4 v{vH}, s[24:27], s40 offen lds'], s)
            if path == 1:
                p.dma([f's_add_u32 m0, s35, {b + 16384}', f's_mov_b32 s40, {so}',
                       f'buffer_load_dwordx4 v{vW+2}, s[44:47], s40 offen lds'], s)
        def dma_d(j):
            for i in range(5 if path == 0 else 4):
                p.dma([f's_add_u32 m0, s34, {DS[j%4] + i*8192}', f's_mov_b32 s40, {i*64*1152 + j*128}',
                       f'buffer_load_dwordx4 v{vD}, s[20:23], s40 offen lds'], 18 + j)
        lastm = {}
        for s in range(18):
            order = [(ks, t, m) for ks in range(2) for t in range(nt) for m in range(2)]
            if s == 17: order = [(ks, t, m) for t in range(nt) for m in range(2) for ks in range(2)]
            seen = set()
            for (ks, t, m) in order:
                hb = HB + 8 * (s & 1) + 4 * ks
                ex = []
                if ks not in seen:
                    seen.add(ks); ex = [f'ds_read_b128 v[{hb}:{hb+3}], v{aH + s%3} offset:{ks*1024}']
                off = m * 18432 + ks * 9216 + (t0 + t) * 64
                acc = (G, U)[m][t]
                i = p.add(s, lambda f, off=off, a=aW + s % 3: [f'ds_read_b64_tr_b16 v[{f}:{f+1}], v{a} offset:{off}',
                                                          f'ds_read_b64_tr_b16 v[{f+2}:{f+3}], v{a} offset:{off+4*576}'],
                          lambda f, acc=acc, hb=hb, z=(s == 0 and ks == 0): f'{MF} v[{acc}:{acc+15}], v[{f}:{f+3}], v[{hb}:{hb+3}], ' + ('0' if z else f'v[{acc}:{acc+15}]'),
                          ex)
                lastm[t] = i
        n1 = len(p.slots)
        own = [2 * t0 + j for j in range(2 * nt)]; par = [x for x in range(18) if x not in own]
        bf = {}
        for j, ks in enumerate(own): bf[ks] = U[j // 2] + 4 * (j & 1)
        for j, ks in enumerate(par): bf[ks] = G[j // 4] + 4 * (j & 3)
        A2 = [240, G[3]]
        OUT = [U[0] + 8, U[1] + 8]
        cvt_done = {}
        for t in range(nt):
            dl = n1 + 2 * t
            p.valu([f'v_mul_f32 v{G[t]+r}, v{G[t]+r}, v{U[t]+r}' for r in range(16)], lastm[t] + 2, dl)
            p.valu([f'v_cvt_pk_bf16_f32 v{U[t]+r}, v{G[t]+2*r}, v{G[t]+2*r+1}' for r in range(8)], lastm[t] + 2, dl)
            p.valu([lambda t=t: cvt_done.__setitem__(t, True)], lastm[t] + 2, dl)
            for h in range(2):
                p.xq.append((lambda t=t: t in cvt_done, 0, f'ds_write_b128 v{aX}, v[{U[t]+4*h}:{U[t]+4*h+3}] offset:{(2*(t0+t)+h)*1024}'))
        for j in range(9):
            acc = A2[j & 1]
            for n, ks in enumerate(own + par):
                st = 18 + j; ex = []
                if j == 0 and ks in par:
                    st = 'X'; ex = [f'ds_read_b128 v[{bf[ks]}:{bf[ks]+3}], v{aX} offset:{ks*1024}']
                i = p.add(st, lambda f, ks=ks, a=aD + j % 4: [f'ds_read_b64_tr_b16 v[{f}:{f+1}], v{a} offset:{ks*2048}',
                                                         f'ds_read_b64_tr_b16 v[{f+2}:{f+3}], v{a} offset:{ks*2048+1024}'],
                          lambda f, acc=acc, b=bf[ks], z=(n == 0): f'{MF} v[{acc}:{acc+15}], v[{f}:{f+3}], v[{b}:{b+3}], ' + ('0' if z else f'v[{acc}:{acc+15}]'),
                          ex)
            o = OUT[j & 1]
            p.valu([f'v_cvt_pk_bf16_f32 v{o+r}, v{acc+2*r}, v{acc+2*r+1}' for r in range(8)] + [f's_movk_i32 s41, {j*4096}' if j < 8 else 's_mov_b32 s41, 0x8000'] +
                   [f'buffer_store_dwordx4 v[{o+4*q}:{o+4*q+3}], v{vS}, s[24:27], s41 offen offset:{q*1024}' for q in range(2)], i + 3, i + 18)
        def barrier(st, i, rd):
            if st == 'X':
                if len(cvt_done) < nt and rd > i: return False
                p.flush_v(n1 + 2 * nt); p.flush_x()
                k.wait(lg0=True); k.I('s_barrier'); return True
            p.flush_dma([st]); k.wait(vmtag=st, lg0=True); k.I('s_barrier')
            if 1 <= st <= 15: dma_w(st + 2)
            if st == 16: dma_d(0)
            if st == 17: dma_d(1)
            if st == 18: p.xopen = True
            if st == 19: dma_d(2); dma_d(3); dma_d(4)
            if 20 <= st <= 23: dma_d(st - 15)
            return True
        for s in range(3): dma_w(s)
        p.flush_dma()
        p.run(barrier)
        p.flush_all_v()
        k.wait(vm0=True); k.I('s_endpgm')
    k.label(f'{k.name}_end'); k.reset(); k.I('s_endpgm')
    return (k, 256, 512, 163840)
```

```python
from asmlib import *
WS_MOD = 0; WS_H = 0x10000; WS_X2 = 0x400000; WS_H2 = 0x800000; WS_PART = 0x1000000
WS_SIZE = 268435456
NX = 2048 * 576 * 2
PSL = 64 * 18 * 2048

def guard(k, nwg):
    k.I(f's_cmp_ge_u32 s2, {nwg}'); k.I(f's_cbranch_scc1 {k.name}_end')
def finish(k):
    k.wait(vm0=True)
    k.label(f'{k.name}_end'); k.I('s_endpgm')
def rnd2(k, a, b, t):
    k.I(f'v_cvt_pk_bf16_f32 v{t}, v{a}, v{b}')
    k.I(f'v_lshlrev_b32 v{a}, 16, v{t}'); k.I(f'v_and_b32 v{b}, 0xffff0000, v{t}')
def rnd1(k, a):
    k.I(f'v_cvt_pk_bf16_f32 v{a}, v{a}, v{a}'); k.I(f'v_lshlrev_b32 v{a}, 16, v{a}')
def rnd8(k, a, t):
    for i in range(4): k.I(f'v_cvt_pk_bf16_f32 v{t+i}, v{a+2*i}, v{a+2*i+1}')
    unpack8(k, a, t)
def unpack8(k, a, t):
    for i in range(4):
        k.I(f'v_lshlrev_b32 v{a+2*i}, 16, v{t+i}'); k.I(f'v_and_b32 v{a+2*i+1}, 0xffff0000, v{t+i}')

def gen_k0():
    k = Kern('k0_mod_kernel')
    guard(k, 216)
    k.L('''s_load_dwordx2 s[4:5], s[0:1], 72
           s_load_dwordx2 s[6:7], s[0:1], 80
           s_load_dwordx2 s[8:9], s[0:1], 104
           s_and_b32 s3, s2, 7
           s_mul_i32 s3, s3, 27
           s_lshr_b32 s10, s2, 3
           s_add_u32 s3, s3, s10
           v_and_b32 v1, 1, v0
           v_lshrrev_b32 v2, 1, v0
           s_movk_i32 s10, 6912
           v_mul_lo_u32 v3, v2, s10
           v_lshl_add_u32 v3, v1, 4, v3
           s_lshl_b32 s11, s3, 5
           v_add_u32 v3, s11, v3
           v_lshlrev_b32 v4, 1, v2''')
    k.wait(lg0=True)
    k.srd(12, 4, 1152); k.srd(16, 6, 576 * 6912); k.srd(20, 8, 3456 * 4)
    for j in range(3):
        k.I(f'buffer_load_ushort v{8+j}, v4, s[12:15], 0 offen offset:{384*j}')
    for j in range(3):
        k.I(f's_mov_b32 s24, {192*6912*j}')
        k.I(f'buffer_load_dwordx4 v[{12+4*j}:{15+4*j}], v3, s[16:19], s24 offen')
    for j in range(3):
        c = 8 + j
        k.L(f'''v_lshlrev_b32 v{c}, 16, v{c}
                v_mul_f32 v5, 0xbfb8aa3b, v{c}
                v_exp_f32 v5, v5
                v_add_f32 v5, 1.0, v5
                v_rcp_f32 v5, v5
                v_mul_f32 v5, v{c}, v5
                v_cvt_pk_bf16_f32 v5, v5, v5
                v_and_b32 v{24+j}, 0xffff, v5
                v_and_b32 v{28+j}, 0xffff0000, v5''')
    for j in range(3):
        for i in range(4):
            for h in range(2):
                acc = 32 + 2 * i + h
                k.I(f'v_dot2_f32_bf16 v{acc}, v{12+4*j+i}, v{24+4*h+j}, ' + ('0' if j == 0 else f'v{acc}'))
    k.nop(3)
    for st in ['quad_perm:[2,3,0,1]', 'row_ror:4', 'row_ror:8']:
        for i in range(8):
            k.I(f'v_add_f32_dpp v{32+i}, v{32+i}, v{32+i} {st} row_mask:0xf bank_mask:0xf')
    k.L('''v_lshrrev_b32 v5, 4, v0
           v_lshlrev_b32 v5, 6, v5
           v_lshl_add_u32 v5, v1, 5, v5
           s_mov_b32 exec_lo, 0x00030003
           s_mov_b32 exec_hi, 0x00030003
           ds_write_b128 v5, v[32:35]
           ds_write_b128 v5, v[36:39] offset:16''')
    k.I('s_mov_b64 exec, -1')
    k.wait(lg0=True); k.I('s_barrier')
    k.L(f'''v_readfirstlane_b32 s25, v0
           s_cmp_ge_u32 s25, 64
           s_cbranch_scc1 {k.name}_end
           v_lshlrev_b32 v5, 2, v0''')
    for j in range(6): k.I(f'ds_read_b32 v{8+j}, v5 offset:{256*j}')
    for j in range(1, 6): k.I(f'v_add_f32 v8, v8, v{8+j}')
    for sw in ['v_permlane16_swap_b32', 'v_permlane32_swap_b32']:
        k.I('v_mov_b32 v9, v8'); k.I(f'{sw} v9, v8'); k.I('v_add_f32 v8, v8, v9')
    rnd1(k, 8)
    k.L('''s_mul_i32 s26, s3, 1821
           s_lshr_b32 s26, s26, 16
           s_mov_b32 s27, 0
           s_cmp_eq_u32 s26, 1
           s_cselect_b32 s27, 1.0, s27
           s_cmp_eq_u32 s26, 4
           s_cselect_b32 s27, 1.0, s27
           v_add_f32 v8, s27, v8''')
    rnd1(k, 8)
    k.L('''s_lshl_b32 s11, s3, 6
           v_add_u32 v5, s11, v5
           s_mov_b64 exec, 0xffff
           buffer_store_dword v8, v5, s[20:23], 0 offen''')
    finish(k)
    return (k, 216, 384, 24 * 64)

def rowsum(k, src, ldsoff, t, dst):
    k.I(f'v_add_f32_dpp v{src}, v{src}, v{src} row_ror:8 row_mask:0xf bank_mask:0xf')
    for sw in ['v_permlane16_swap_b32', 'v_permlane32_swap_b32']:
        k.I(f'v_mov_b32 v{t}, v{src}'); k.I(f'{sw} v{t}, v{src}'); k.I(f'v_add_f32 v{src}, v{src}, v{t}')
    k.I('s_mov_b64 exec, 0xff')
    k.I(f'ds_write_b32 v6, v{src} offset:{ldsoff}')
    k.I('s_mov_b64 exec, -1')
    k.wait(lg0=True); k.I('s_barrier')
    k.I(f'ds_read_b128 v[{t}:{t+3}], v7 offset:{ldsoff}')
    k.I(f'ds_read_b128 v[{t+4}:{t+7}], v7 offset:{ldsoff+16}')
    k.I(f'ds_read_b32 v{t+8}, v7 offset:{ldsoff+32}')
    k.L(f'''v_add_f32 v{t}, v{t}, v{t+1}
            v_add_f32 v{t+2}, v{t+2}, v{t+3}
            v_add_f32 v{t+4}, v{t+4}, v{t+5}
            v_add_f32 v{t+6}, v{t+6}, v{t+7}
            v_add_f32 v{t}, v{t}, v{t+2}
            v_add_f32 v{t+4}, v{t+4}, v{t+6}
            v_add_f32 v{t}, v{t}, v{t+8}
            v_add_f32 v{dst}, v{t}, v{t+4}''')

def gen_row(mode):
    k = Kern({'h': 'k0b_h_kernel', 'ln2': 'k2_ln2_kernel', 'out': 'k4_out_kernel'}[mode])
    guard(k, 256)
    k.L('''s_load_dwordx2 s[4:5], s[0:1], 0
           s_load_dwordx2 s[6:7], s[0:1], 88
           s_load_dwordx2 s[8:9], s[0:1], 104
           v_and_b32 v1, 7, v0
           v_lshrrev_b32 v2, 3, v0
           s_lshl_b32 s3, s2, 3
           v_add_u32 v3, s3, v1
           s_movk_i32 s10, 1152
           v_mul_lo_u32 v4, v3, s10
           v_lshl_add_u32 v4, v2, 4, v4
           v_lshlrev_b32 v5, 5, v2
           v_mul_u32_u24 v7, 48, v1
           v_lshrrev_b32 v6, 6, v0
           v_lshl_add_u32 v6, v6, 2, v7
           v_and_b32 v3, 31, v3
           s_lshr_b32 s11, s2, 2''')
    X = 16; T = 24; M1 = 40; M2 = 48; M3 = 56; P = 64; ACC = 128
    if mode != 'h':
        k.L(f'''v_lshrrev_b32 v8, 2, v2
                v_lshlrev_b32 v8, 11, v8
                v_and_b32 v9, 1, v2
                v_lshl_add_u32 v8, v9, 10, v8
                v_bfe_u32 v9, v2, 1, 1
                v_lshl_add_u32 v8, v9, 9, v8
                v_lshl_add_u32 v8, v3, 4, v8
                s_mul_i32 s12, s11, {18*2048}
                s_add_u32 s12, s12, {WS_PART}
                v_add_u32 v8, s12, v8''')
    if mode != 'out':
        k.L(f'''v_lshrrev_b32 v10, 1, v2
                v_lshlrev_b32 v10, 10, v10
                v_and_b32 v9, 1, v2
                v_lshl_add_u32 v10, v9, 9, v10
                v_lshl_add_u32 v10, v3, 4, v10
                s_mul_i32 s13, s11, {36*1024}
                s_add_u32 s13, s13, {WS_H if mode == 'h' else WS_H2}
                v_add_u32 v10, s13, v10''')
    k.wait(lg0=True)
    k.srd(16, 4, NX); k.srd(20, 6, NX); k.srd(24, 8, WS_SIZE)
    k.I(f's_mov_b32 s28, {WS_X2}')
    if mode == 'out': k.I(f'buffer_load_dwordx4 v[{T}:{T+3}], v4, s[24:27], s28 offen')
    else: k.I(f'buffer_load_dwordx4 v[{T}:{T+3}], v4, s[16:19], 0 offen')
    if mode != 'h':
        for sl in range(16):
            k.I(f's_mov_b32 s29, {sl*PSL}')
            k.I(f'buffer_load_dwordx4 v[{P+4*sl}:{P+4*sl+3}], v8, s[24:27], s29 offen')
    def ldmod(dst, seg):
        k.I(f's_movk_i32 s29, {seg*2304}')
        k.I(f'buffer_load_dwordx4 v[{dst}:{dst+3}], v5, s[24:27], s29 offen')
        k.I(f'buffer_load_dwordx4 v[{dst+4}:{dst+7}], v5, s[24:27], s29 offen offset:16')
    if mode == 'h': ldmod(M1, 1); ldmod(M2, 0)
    if mode == 'ln2': ldmod(M3, 2); ldmod(M1, 4); ldmod(M2, 3)
    if mode == 'out': ldmod(M3, 5)
    unpack8(k, X, T)
    if mode != 'h':
        k.I('s_mov_b32 s30, 0x3f80'); k.I('s_mov_b32 s31, 0x3f800000')
        for sl in range(16):
            for i in range(4):
                for h in range(2):
                    a = ACC + 2 * i + h
                    k.I(f'v_dot2_f32_bf16 v{a}, v{P+4*sl+i}, s{30+h}, ' + ('0' if sl == 0 else f'v{a}'))
        k.nop(3)
        rnd8(k, ACC, T)
        for i in range(8): k.I(f'v_mul_f32 v{ACC+i}, v{M3+i}, v{ACC+i}')
        rnd8(k, ACC, T)
        for i in range(8): k.I(f'v_add_f32 v{X+i}, v{X+i}, v{ACC+i}')
        for i in range(4): k.I(f'v_cvt_pk_bf16_f32 v{12+i}, v{X+2*i}, v{X+2*i+1}')
        if mode == 'out':
            k.I('buffer_store_dwordx4 v[12:15], v4, s[20:23], 0 offen')
            finish(k); return (k, 256, 576, 0)
        k.I('buffer_store_dwordx4 v[12:15], v4, s[24:27], s28 offen')
        unpack8(k, X, 12)
    k.L(f'''v_add_f32 v11, v{X}, v{X+1}
            v_add_f32 v9, v{X+2}, v{X+3}
            v_add_f32 v{T}, v{X+4}, v{X+5}
            v_add_f32 v{T+1}, v{X+6}, v{X+7}
            v_add_f32 v11, v11, v9
            v_add_f32 v{T}, v{T}, v{T+1}
            v_add_f32 v11, v11, v{T}''')
    rowsum(k, 11, 0, T, 11)
    k.I(f'v_mul_f32 v11, {0x3ae38e39:#x}, v11')
    for i in range(8): k.I(f'v_sub_f32 v{T+i}, v{X+i}, v11')
    k.I(f'v_mul_f32 v9, v{T}, v{T}')
    for i in range(1, 8): k.I(f'v_fmac_f32 v9, v{T+i}, v{T+i}')
    rowsum(k, 9, 512, T, 9)
    k.I(f'v_mul_f32 v9, {0x3ae38e39:#x}, v9')
    rnd2(k, 11, 9, T)
    k.I(f'v_add_f32 v9, {0x3727c5ac:#x}, v9'); rnd1(k, 9)
    k.I('v_sqrt_f32 v9, v9'); rnd1(k, 9)
    k.I('v_rcp_f32 v9, v9')
    for i in range(8): k.I(f'v_sub_f32 v{X+i}, v{X+i}, v11')
    rnd8(k, X, T)
    for i in range(8): k.I(f'v_mul_f32 v{X+i}, v{X+i}, v9')
    rnd8(k, X, T)
    for i in range(8): k.I(f'v_mul_f32 v{X+i}, v{X+i}, v{M1+i}')
    rnd8(k, X, T)
    for i in range(8): k.I(f'v_add_f32 v{X+i}, v{X+i}, v{M2+i}')
    for i in range(4): k.I(f'v_cvt_pk_bf16_f32 v{T+i}, v{X+2*i}, v{X+2*i+1}')
    k.I(f'buffer_store_dwordx4 v[{T}:{T+3}], v10, s[24:27], 0 offen')
    finish(k)
    return (k, 256, 576, 1024)
```

```python
from asmlib import *
from collections import deque
COST = lambda t: 8 if t.startswith(TRANS) else (6 if t.startswith('ds_') or t.startswith('buffer_') else (1 if t.startswith('s_') else 4))
class Slot:
    def __init__(s, stage, rd, mf, extra=None):
        s.stage = stage; s.rd = rd; s.mf = mf; s.extra = extra or []
class Pipe:
    def __init__(s, k, FR, NF=8, LA=6, BG=2, MINLA=2):
        s.k = k; s.FR = FR; s.NF = NF; s.LA = LA; s.BG = BG; s.MINLA = MINLA
        s.slots = []; s.vq = deque(); s.dq = deque(); s.xq = deque(); s.xopen = False
        s.hooks = {}
        s.budget = 24; s.budgets = {}; s.dma_gap = 1
    def add(s, *a, **kw):
        s.slots.append(Slot(*a, **kw)); return len(s.slots) - 1
    def valu(s, texts, mn, dl):
        for t in texts: s.vq.append((mn, dl, t))
    def emit_item(s, it):
        if callable(it[2]): it[2]()
        else:
            s.k.I(it[2])
    def flush_v(s, i):
        last = -1
        for j, it in enumerate(s.vq):
            if it[1] <= i: last = j
        for _ in range(last + 1):
            it = s.vq.popleft(); assert it[0] - 3 <= s.done, (it, i); s.emit_item(it)
    def flush_all_v(s):
        while s.vq: s.emit_item(s.vq.popleft())
    def flush_x(s):
        while s.xq: s.emit_item(s.xq.popleft())
    def dma(s, texts, tag): s.dq.append((texts, tag))
    def emit_dma(s):
        texts, tag = s.dq.popleft()
        for t in texts[:-1]: s.k.I(t)
        s.k.I(texts[-1], tag=tag)
    def flush_dma(s, tags=None):
        if tags is None:
            while s.dq: s.emit_dma()
        else:
            last = -1
            for j, it in enumerate(s.dq):
                if it[1] in tags: last = j
            for _ in range(last + 1): s.emit_dma()
    def run(s, barrier_fn, first_open=None):
        k = s.k; n = len(s.slots); rd = 0; cur = first_open; last = -99; s.done = -1; lastd = -99
        for i in range(n):
            cnt = 0
            while rd < n and rd <= i + s.LA and (cnt < 2 or rd <= i + s.MINLA):
                sl = s.slots[rd]
                if sl.stage != cur:
                    if i - last < s.BG and rd > i + s.MINLA: break
                    if not barrier_fn(sl.stage, i, rd): break
                    cur = sl.stage
                f = s.FR + 4 * (rd % s.NF)
                for t in sl.extra: k.I(t)
                for t in sl.rd(f): k.I(t)
                rd += 1; cnt += 1; last = i
            assert rd > i
            s.flush_v(i)
            k.I(s.slots[i].mf(s.FR + 4 * (i % s.NF))); s.done = i
            b = s.budgets.get(i, s.budget)
            if s.dq and i - lastd >= s.dma_gap:
                s.emit_dma(); b -= 8; lastd = i
            while s.xopen and s.xq and s.xq[0][0]() and b > 0:
                s.emit_item(s.xq.popleft()); b -= 6
            while s.vq and s.vq[0][0] <= i and b > 0:
                it = s.vq.popleft(); s.emit_item(it); b -= 0 if callable(it[2]) else COST(it[2])
            for fn in s.hooks.get(i, []): fn()
```

```python
import sys
from gen_k1 import *
def full(path, **kw):
    ks = [gen_k0(), gen_row('h'), gen_k1(**kw), gen_row('ln2'), gen_k3(), gen_row('out')]
    write_file(path, ks)
    for k, *_ in ks: print(k.name, k.ninst, 'nops', k.nops, 'vgpr', k.maxv, k.stat)
if __name__ == '__main__':
    full('full.s')
    write_file('k1t.s', [gen_k1(), gen_row('ln2')])
    write_file('k1r.s', [gen_k1(thr=0x40000000), gen_row('ln2')])
```
